```python
import torch

def _softmax(x, axis=-1):
    return torch.softmax(x, dim=axis)
def _gelu(x):
    return torch.nn.functional.gelu(x, approximate="tanh")
def _silu(x):
    return torch.nn.functional.silu(x)
def _sigmoid(x):
    return torch.sigmoid(x)
def _layernorm(x, axis=-1, eps=1e-5):
    m = x.mean(dim=axis, keepdim=True)
    v = x.var(dim=axis, keepdim=True, unbiased=False)
    return (x - m) / torch.sqrt(v + eps)
def _scatter_add(tgt, idx, src, axis=0):
    return tgt.clone().index_add_(axis, idx, src)
def _segment_sum(src, seg, n):
    out = torch.zeros((n,) + src.shape[1:], dtype=src.dtype)
    return out.index_add_(0, seg, src)
def _pad(x, pw):
    flat = tuple(v for pair in reversed(pw) for v in pair)
    return torch.nn.functional.pad(x, flat)

kernel_name = 'recurrent_scan__linear_kernel_hedgehog__dense_activation_silu__prompt'

def setup_inputs():

    _w = (lambda a: (lambda t: t.to(torch.bfloat16) if t.is_floating_point() else t)(torch.as_tensor(a)))
    def _A_setup():
        B, S, D, H = 1, 2048, 512, 32
        Dh = D // H
        return {
            "x": _w((lambda *s: torch.randn(*s, dtype=torch.bfloat16) * 0.05)(B, S, D)),
            "wqkv": _w((lambda *s: torch.randn(*s, dtype=torch.bfloat16) * 0.4)(D, 3 * D)),
            "w_phi": _w((lambda *s: torch.randn(*s, dtype=torch.bfloat16) * 0.4)(H, Dh, Dh) * (Dh ** -0.5)),
            "wo": _w((lambda *s: torch.randn(*s, dtype=torch.bfloat16) * 0.2)(D, D)),
        }
    _A_in = _A_setup()

    def _B_setup():
        B, S, D, F = 1, 2048, 512, 1376
        return {
            "x": _w((lambda *s: torch.randn(*s, dtype=torch.bfloat16) * 0.05)(B, S, D)),
            "w1": _w((lambda *s: torch.randn(*s, dtype=torch.bfloat16) * 0.4)(D, F) * (D ** -0.5)),
            "w2": _w((lambda *s: torch.randn(*s, dtype=torch.bfloat16) * 0.1)(F, D) * (F ** -0.5)),
        }
    _B_in = _B_setup()

    return {
        "A_x": _A_in["x"],
        "A_wqkv": _A_in["wqkv"],
        "A_w_phi": _A_in["w_phi"],
        "A_wo": _A_in["wo"],
        "B_x": _B_in["x"],
        "B_w1": _B_in["w1"],
        "B_w2": _B_in["w2"],
    }

def reference(A_x, A_wqkv, A_w_phi, A_wo, B_x, B_w1, B_w2):
    def _A_ref(x, wqkv, w_phi, wo):
        B, S, D = x.shape
        H = 32; Dh = D // H
        qkv = (lambda x, *d: x.permute(*d))((x @ wqkv).reshape(B, S, 3, H, Dh), 2, 0, 3, 1, 4)
        q, k, v = qkv[0], qkv[1], qkv[2]
        pq = torch.einsum("bhsd,hdf->bhsf", q, w_phi)
        pk = torch.einsum("bhsd,hdf->bhsf", k, w_phi)
        phi_q = torch.concatenate([_softmax(pq, axis=-1), _softmax(-pq, axis=-1)], axis=-1)
        phi_k = torch.concatenate([_softmax(pk, axis=-1), _softmax(-pk, axis=-1)], axis=-1)
        kv = torch.einsum("bhsf,bhsd->bhfd", phi_k, v)
        z  = torch.einsum("bhsf->bhf", phi_k)
        num = torch.einsum("bhqf,bhfd->bhqd", phi_q, kv)
        den = torch.einsum("bhqf,bhf->bhq", phi_q, z)[..., None] + 1e-6
        o = num / den
        return (lambda x, *d: x.permute(*d))(o, 0, 2, 1, 3).reshape(B, S, D) @ wo

    def _B_ref(x, w1, w2):
        h = torch.einsum("bsd,df->bsf", x, w1)
        h = _silu(h)
        out = torch.einsum("bsf,fd->bsd", h, w2)
        return out

    x = A_x
    xn = _layernorm(x, axis=-1)
    s = _A_ref(xn, A_wqkv, A_w_phi, A_wo)
    g = _silu(_B_ref(xn, B_w1, B_w2))
    return x + s * g
```

```python
import sys
from common import *
HEADER = """; Kernarg layout for this problem (80 bytes, ptrs only, base s[0:1]):
"""
def assemble_file(kernels):
    out = HEADER
    for (name, text, lds, grid, block) in kernels:
        out += f"; @launch kernel={name} grid=({grid},1,1) block=({block},1,1) lds={lds}\n"
    out += '.amdgcn_target "amdgcn-amd-amdhsa--gfx950"\n'
    for (name, text, lds, grid, block) in kernels:
        out += text
    return out
```

```python
import struct
S_TOK, DM, NH, DH, FF = 2048, 512, 32, 16, 1376
NU = FF // 32
WS_H = 0
WS_H_SIZE = 128 * NU * 1024
WS_E = 6 << 20
WS_E_SIZE = 128 * 32 * 1024
WS_O = 11 << 20
WS_O_SIZE = 128 * 16 * 1024
WS_KV = 14 << 20
KV_HEAD = 17 * 128
WS_KV_SIZE = 32 * KV_HEAD
WS_USED = 15 << 20
LOG2E = 1.4426950408889634
LN2 = 0.6931471805599453
LAMBDA = -LOG2E
def f2u(x): return struct.unpack("<I", struct.pack("<f", x))[0]
def hx(x): return hex(f2u(x))
KNAME = "recurrent_scan__linear_kernel_hedgehog__dense_activation_silu__prompt"

def kernel_desc(name, vgpr, sgpr, accum):
    return f""".section .rodata,"a"
.p2align 6
.amdhsa_kernel {name}
  .amdhsa_next_free_vgpr {vgpr}
  .amdhsa_next_free_sgpr {sgpr}
  .amdhsa_accum_offset {accum}
  .amdhsa_group_segment_fixed_size 0
  .amdhsa_kernarg_size 80
  .amdhsa_user_sgpr_count 2
  .amdhsa_user_sgpr_kernarg_segment_ptr 1
  .amdhsa_system_sgpr_workgroup_id_x 1
  .amdhsa_float_denorm_mode_32 3
.end_amdhsa_kernel
"""
def kernel_head(name):
    return f""".text
.globl {name}
.p2align 8
.type {name},@function
{name}:
"""
```

```python
import re

TRANS = ("v_exp_f32", "v_log_f32", "v_rcp_f32", "v_rsq_f32", "v_sqrt_f32", "v_sin_f32", "v_cos_f32", "v_rcp_iflag_f32")
RMW = ("v_fmac_f32", "v_dot2c_f32_bf16", "v_writelane_b32", "v_mac_f32", "v_pk_fmac_f16")

def regs_of(tok):
    tok = tok.strip()
    neg = tok.lstrip("-")
    if neg.startswith("abs(") and neg.endswith(")"):
        neg = neg[4:-1]
    if neg.startswith("|") and neg.endswith("|"):
        neg = neg[1:-1]
    m = re.fullmatch(r"([vas])(\d+)", neg)
    if m:
        return {(m.group(1), int(m.group(2)))}
    m = re.fullmatch(r"([vas])\[(\d+):(\d+)\]", neg)
    if m:
        return {(m.group(1), i) for i in range(int(m.group(2)), int(m.group(3)) + 1)}
    if neg == "vcc":
        return {("s", "vcc_lo"), ("s", "vcc_hi")}
    if neg in ("vcc_lo", "vcc_hi"):
        return {("s", neg)}
    if neg == "exec":
        return {("s", "exec_lo"), ("s", "exec_hi")}
    if neg in ("exec_lo", "exec_hi"):
        return {("s", neg)}
    if neg == "m0":
        return {("s", "m0")}
    return set()

def split_ops(s):
    out, depth, cur = [], 0, ""
    for ch in s:
        if ch in "[(":
            depth += 1
        if ch in "])":
            depth -= 1
        if ch == "," and depth == 0:
            out.append(cur.strip()); cur = ""
        else:
            cur += ch
    if cur.strip():
        out.append(cur.strip())
    return out

class Ins:
    __slots__ = ("text", "mn", "ops", "mods", "kind", "rd", "wr", "passes", "srcC", "srcAB", "store_data", "comment", "size")
    def __init__(self, text):
        self.text = text
        t = text.split(";")[0].strip()
        parts = t.split(None, 1)
        self.mn = parts[0]
        rest = parts[1] if len(parts) > 1 else ""
        ops = split_ops(rest)
        mods = ""
        if ops:
            last = ops[-1].split()
            if len(last) > 1:
                ops[-1] = last[0]; mods = " ".join(last[1:])
            elif len(last) == 1 and (":" in last[0] and not last[0][0] in "vas" ) and not re.fullmatch(r"[vas]\[\d+:\d+\]", last[0]) and not last[0].startswith("hwreg") and not last[0].startswith("vmcnt") and not last[0].startswith("lgkmcnt"):
                mods = last[0]; ops = ops[:-1]
        self.ops, self.mods = ops, mods
        self.passes = 0; self.srcC = set(); self.srcAB = set(); self.store_data = set()
        self.rd, self.wr = set(), set()
        self.classify()
    def classify(self):
        mn, ops = self.mn, self.ops
        base = re.sub(r"_(e32|e64|sdwa|dpp)$", "", mn)
        R = lambda i: regs_of(ops[i]) if i < len(ops) else set()
        allr = lambda lo: set().union(*[regs_of(o) for o in ops[lo:]]) if len(ops) > lo else set()
        if base.startswith("v_mfma"):
            self.kind = "mfma"
            self.wr = R(0); self.srcAB = R(1) | R(2); self.srcC = R(3); self.rd = self.srcAB | self.srcC
            self.passes = 8 if "32x32" in base else 4
        elif base.startswith("v_"):
            self.kind = "trans" if base in TRANS else "valu"
            if base.startswith("v_cmp"):
                self.wr = R(0); self.rd = allr(1)
            elif base in ("v_readfirstlane_b32", "v_readlane_b32"):
                self.kind = "readlane"; self.wr = R(0); self.rd = allr(1)
            elif base.startswith("v_permlane") and "swap" in base:
                self.kind = "permlane"; self.wr = R(0) | R(1); self.rd = R(0) | R(1)
            elif base in ("v_add_co_u32", "v_sub_co_u32"):
                self.wr = R(0) | R(1); self.rd = allr(2)
            elif base in ("v_addc_co_u32", "v_subb_co_u32"):
                self.wr = R(0) | R(1); self.rd = allr(2)
            else:
                self.wr = R(0); self.rd = allr(1)
                if base in RMW:
                    self.rd |= self.wr
                if base == "v_cndmask_b32" and len(ops) == 3:
                    self.rd |= regs_of("vcc")
            if "row_" in self.mods or "quad_perm" in self.mods or mn.endswith("_dpp"):
                self.kind = "dpp"
        elif base.startswith("ds_"):
            if base.startswith("ds_read") or base.startswith("ds_bpermute") or base.startswith("ds_swizzle"):
                self.kind = "ds_read"; self.wr = R(0); self.rd = allr(1)
            else:
                self.kind = "ds_write"; self.rd = allr(0)
        elif base.startswith("buffer_") or base.startswith("global_"):
            lds = " lds" in (" " + self.mods)
            if base in ("buffer_wbl2", "buffer_inv"):
                self.kind = "vmem_misc"
            elif "load" in base and lds:
                self.kind = "vmem_dma"; self.rd = allr(0) | {("s", "m0")}
            elif "load" in base:
                self.kind = "vmem_load"; self.wr = R(0); self.rd = allr(1)
                if "d16" in base: self.rd |= self.wr
            elif "atomic" in base:
                self.kind = "vmem_atomic"; self.rd = allr(0)
                if "sc0" in self.mods and base.startswith("buffer"): self.wr = R(0)
            else:
                self.kind = "vmem_store"; self.rd = allr(0)
                if base.startswith("buffer"):
                    d = R(0)
                else:
                    d = R(1)
                if len(d) >= 3: self.store_data = d
        elif base == "s_nop":
            self.kind = "nop"
        elif base == "s_waitcnt":
            self.kind = "wait"
        elif base in ("s_barrier", "s_sleep", "s_setprio", "s_endpgm"):
            self.kind = base[2:]
        elif base.startswith("s_cbranch") or base == "s_branch":
            self.kind = "branch"
            if "vcc" in base: self.rd = regs_of("vcc")
            if "exec" in base: self.rd = regs_of("exec")
        elif base.startswith("s_load") or base.startswith("s_memtime") or base.startswith("s_memrealtime"):
            self.kind = "smem"; self.wr = R(0); self.rd = allr(1)
        elif base.startswith("s_cmp") or base.startswith("s_bitcmp"):
            self.kind = "salu"; self.rd = allr(0)
        elif base.startswith("s_"):
            self.kind = "salu"; self.wr = R(0); self.rd = allr(1)
            if "saveexec" in base:
                self.wr |= regs_of("exec"); self.rd |= regs_of("exec")
            if base in ("s_addk_i32", "s_mulk_i32"): self.rd |= self.wr
        else:
            raise ValueError("unclassified: " + self.text)
    def ws(self):
        if self.kind == "nop":
            return int(self.ops[0], 0) + 1
        return 1

class Label:
    def __init__(self, name): self.name = name; self.text = name + ":"

class Raw:
    def __init__(self, text): self.text = text

def is_valu(k): return k in ("valu", "trans", "permlane", "readlane", "dpp")
VEC = lambda regs: {r for r in regs if r[0] in "va"}
SCL = lambda regs: {r for r in regs if r[0] == "s"}

def need(p, c):
    n = 0
    pk, ck = p.kind, c.kind
    if is_valu(pk):
        pw = VEC(p.wr); sw = SCL(p.wr)
        if ck == "mfma" and pw & c.rd: n = max(n, 2)
        if ck == "permlane" and pw & c.rd: n = max(n, 2)
        if ck == "dpp" and pw & c.rd: n = max(n, 2)
        if ck == "readlane" and pw & VEC(c.rd): n = max(n, 1)
        if pk == "trans" and is_valu(ck) and ck != "trans" and pw & c.rd: n = max(n, 1)
        if pk == "trans" and ck == "trans" and pw & c.rd: n = max(n, 1)
        if ("sdwa" in p.mn or "op_sel" in p.mods) and is_valu(ck) and pw & (c.rd | c.wr): n = max(n, 1)
        if sw:
            if is_valu(ck) and sw & c.rd:
                n = max(n, 4 if ck == "readlane" else 2)
            if ck.startswith("vmem") and sw & c.rd: n = max(n, 5)
            if ck == "branch" and sw & c.rd: n = max(n, 5)
            if ck in ("salu", "smem") and sw & c.rd: n = max(n, 1)
    if p.mn.startswith("v_dot"):
        same = c.mn.split("_e")[0] == p.mn.split("_e")[0]
        pw = VEC(p.wr)
        if same:
            srcs = set().union(*[regs_of(o) for o in c.ops[1:3]])
            if pw & srcs: n = max(n, 3)
        elif pw & (c.rd | c.wr): n = max(n, 3)
    if pk == "mfma":
        P = p.passes
        D = p.wr
        if ck == "mfma":
            if D & c.srcAB: n = max(n, 12 if P == 8 else 8)
            if D & c.srcC:
                if c.srcC == D and c.passes == P: pass
                else: n = max(n, 10 if P == 8 else 6)
            elif D & c.wr and not (c.wr == D): n = max(n, 10 if P == 8 else 6)
        elif is_valu(ck) or ck.startswith("vmem") or ck.startswith("ds_"):
            if D & (c.rd | c.wr): n = max(n, 12 if P == 8 else 8)
        if is_valu(ck) and VEC(p.srcC) & c.wr: n = max(n, 7 if P == 8 else 3)
    if pk == "salu" and ("s", "m0") in p.wr and ck == "vmem_dma": n = max(n, 1)
    if p.store_data and (is_valu(ck) or ck in ("ds_read", "vmem_load")) and p.store_data & c.wr: n = max(n, 2)
    return n

class Prog:
    def __init__(self):
        self.items = []
    def __call__(self, text):
        for line in text.strip().split("\n"):
            line = line.strip()
            if not line or line.startswith(";"):
                continue
            if line.endswith(":"):
                self.items.append(Label(line[:-1]))
            elif line.startswith("."):
                self.items.append(Raw(line))
            else:
                self.items.append(Ins(line))
    def label(self, name): self.items.append(Label(name))
    def extend(self, items): self.items.extend(items)
    def fix_hazards(self, window=22):
        items = self.items
        out = []
        inserted = 0
        def build_src(lst):
            src = {}
            for idx, it in enumerate(lst):
                if isinstance(it, Ins) and it.kind == "branch":
                    src.setdefault(it.ops[0], []).append(idx)
            return src
        i = 0
        src = build_src(items)
        while i < len(items):
            c = items[i]
            if isinstance(c, Ins) and c.kind not in ("nop",):
                worst = 0
                stack = [(i - 1, 0)]
                seen = set()
                while stack:
                    j, dist = stack.pop()
                    while j >= 0 and dist < window:
                        it = items[j]
                        if isinstance(it, Label):
                            for b in src.get(it.name, []):
                                if (b, dist) not in seen:
                                    seen.add((b, dist)); stack.append((b, dist))
                            j -= 1
                            continue
                        if isinstance(it, Raw):
                            j -= 1; continue
                        if it.kind == "endpgm" or (it.kind == "branch" and it.mn == "s_branch" and j != i - 0 and (j, dist) not in seen):
                            break
                        r = need(it, c)
                        if r > dist: worst = max(worst, r - dist)
                        dist += it.ws()
                        j -= 1
                if worst > 0:
                    k = worst
                    nops = []
                    while k > 0:
                        m = min(k, 16); nops.append(Ins(f"s_nop {m-1}")); k -= m
                    items[i:i] = nops
                    inserted += worst
                    i += len(nops)
                    src = build_src(items)
            i += 1
        return inserted
    def text(self):
        lines = []
        for it in self.items:
            if isinstance(it, Label): lines.append(it.text)
            elif isinstance(it, Raw): lines.append(it.text)
            else: lines.append("    " + it.text)
        return "\n".join(lines) + "\n"

class VmTrack:
    def __init__(self, prog): self.p = prog; self.n = 0
    def op(self, text):
        self.p(text); self.n += 1; return self.n
    def mark(self): return self.n
    def wait(self, token, extra=""):
        k = max(0, min(63, self.n - token))
        self.p(f"s_waitcnt vmcnt({k}) {extra}".strip())
        return k

def vr(a, n=1, f="v"):
    return f"{f}{a}" if n == 1 else f"{f}[{a}:{a+n-1}]"
def ar(a, n=1): return vr(a, n, "a")
def sr(a, n=1): return vr(a, n, "s")
```

```python
from fw import *
from common import *
from k2 import srd

XA, XB, R4 = 0, 65536, 131072
LDS_K1 = 163840
Q_BASE = [R4, XA, XA + 32768, XB]
DT2_BASE = [XB + 32768, R4]
PHI_W = XA
ZERO_W = XA + 2048
CONST_V = XA + 4096
PHIK = XA + 32768
VREG = XB

class K1:
    def __init__(self, name="k1_kernel"):
        self.name = name
        self.p = Prog(); self.vm = VmTrack(self.p)
        self.SX, self.SWQ, self.SPHI, self.SW1, self.SDBG, self.SWS = 16, 18, 20, 26, 32, 34
        self.RX, self.R0, self.R1, self.R2, self.RWS, self.RDBG, self.RPHI = 36, 40, 44, 48, 52, 56, 76
        (self.sR, self.sC, self.sI, self.sType, self.sW, self.sT0, self.sT1, self.sT2) = (60, 61, 62, 63, 64, 65, 66, 67)
        self.sO = [68, 69, 70]
        self.s8 = [71, 72, 73]
        self.sM0w = 74
        self.sXoff = 75
        self.sEX = 80
        self.sU1, self.sU2 = 82, 83
        self.sHst, self.sEst, self.sKVst = 84, 85, 86
        self.sStr1 = 87
        self.vDXe, self.vDXo = 1, 2
        self.vXr = 3
        self.vDW = [7, 8, 9]
        self.vTr = [10, 11]
        self.vTc = [12, 13]
        self.vS1, self.vS2 = 14, 16
        self.vOnes, self.vMask, self.vRstd, self.vC0 = 18, 19, 20, 21
        self.vHs, self.vEs = 22, 23
        self.vPhA, self.vPhB = 24, 25
        self.vPoll = 26
        self.vT = 28
        self.vAcc1 = 64
        self.vX = 128
        self.aW = 0
        self.aAcc2 = 32
        self.aPhi = 64

    def prologue(self):
        p, vm, n = self.p, self.vm, self.name
        T0, T1, T2, W = self.sT0, self.sT1, self.sT2, self.sW
        p(f"s_cmp_ge_u32 s2, 256")
        p(f"s_cbranch_scc1 L_{n}_end")
        p("s_load_dwordx16 s[16:31], s[0:1], 0")
        p("s_load_dwordx4 s[32:35], s[0:1], 64")
        p(f"""
        s_and_b32 s{T0}, s2, 7
        s_lshr_b32 s{T1}, s2, 3
        s_and_b32 s{T2}, s{T0}, 1
        s_lshl_b32 s{T2}, s{T2}, 3
        s_and_b32 s{self.sR}, s{T1}, 7
        s_add_u32 s{self.sR}, s{self.sR}, s{T2}
        s_lshr_b32 s{T0}, s{T0}, 1
        s_lshl_b32 s{T0}, s{T0}, 2
        s_lshr_b32 s{T1}, s{T1}, 3
        s_add_u32 s{self.sC}, s{T0}, s{T1}
        s_lshr_b32 s{self.sI}, s{self.sC}, 1
        s_and_b32 s{self.sType}, s{self.sC}, 1
        v_lshrrev_b32 v{self.vT}, 6, v0
        v_and_b32 v0, 63, v0
        v_readfirstlane_b32 s{W}, v{self.vT}
        """)
        t = self.vT
        vrho, vq, va, vb, vc, vi, vg = t, t+1, t+2, t+3, t+4, t+5, t+6
        p(f"""
        v_lshrrev_b32 v{vrho}, 3, v0
        v_and_b32 v{vq}, 7, v0
        v_lshrrev_b32 v{va}, 1, v{vrho}
        v_xor_b32 v{va}, v{va}, v{vq}
        v_lshlrev_b32 v{va}, 4, v{va}
        v_lshlrev_b32 v{vb}, 10, v{vrho}
        v_add_u32 v{self.vDXe}, v{va}, v{vb}
        v_xor_b32 v{self.vDXo}, 64, v{self.vDXe}
        """)
        p(f"""
        s_mul_i32 s{T0}, s{self.sI}, 6
        s_min_u32 s{T1}, s{T0}, 41
        s_add_u32 s{T0}, s{T0}, 2
        s_min_u32 s{self.sU1}, s{T0}, 39
        s_add_u32 s{T0}, s{self.sU1}, 2
        s_cmp_eq_u32 s{self.sType}, 0
        s_cselect_b32 s{self.sU2}, s{T1}, s{T0}
        s_movk_i32 s{T0}, 3072
        s_cselect_b32 s{self.sStr1}, s{T0}, 2752
        """)
        p("s_waitcnt lgkmcnt(0)")
        srd(p, self.RX, self.SX, self.SX+1, S_TOK*1024)
        p(f"""
        s_lshl_b32 s{T0}, s{self.sR}, 17
        s_lshl_b32 s{T1}, s{W}, 15
        s_add_u32 s{self.sXoff}, s{T0}, s{T1}
        s_lshl_b32 s{T2}, s{W}, 14
        """)
        self.tok_zero = None
        srd(p, self.RWS, self.SWS, self.SWS+1, WS_USED)
        srd(p, self.RDBG, self.SDBG, self.SDBG+1, 256)
        p(f"""
        s_lshl_b32 s{T0}, s{self.sI}, 2
        s_add_u32 s{T0}, s{T0}, s{W}
        s_mul_i32 s{T0}, s{T0}, {KV_HEAD}
        s_add_u32 s{self.sKVst}, s{T0}, {WS_KV}
        s_or_b32 s{T0}, s{self.sR}, s{self.sType}
        s_cmp_lg_u32 s{T0}, 0
        s_cbranch_scc1 L_{n}_nozero
        v_mov_b32 v{t+8}, 0
        v_mov_b32 v{t+9}, 0
        v_mov_b32 v{t+10}, 0
        v_mov_b32 v{t+11}, 0
        v_lshlrev_b32 v{t+12}, 4, v0
        buffer_store_dwordx4 v[{t+8}:{t+11}], v{t+12}, {sr(self.RWS,4)}, s{self.sKVst} offen sc1
        buffer_store_dwordx4 v[{t+8}:{t+11}], v{t+12}, {sr(self.RWS,4)}, s{self.sKVst} offen offset:1024 sc1
        s_mov_b64 s[{self.sEX}:{self.sEX+1}], exec
        s_mov_b64 exec, 0xff
        buffer_store_dwordx4 v[{t+8}:{t+11}], v{t+12}, {sr(self.RWS,4)}, s{self.sKVst} offen offset:2048 sc1
        s_mov_b64 exec, s[{self.sEX}:{self.sEX+1}]
        L_{n}_nozero:
        """)
        self.tokx = {}
        for kc in range(8):
            for rg in range(4):
                H = kc >> 2
                p(f"s_add_u32 m0, s{T2}, {H*65536 + (kc&3)*4096 + rg*1024}")
                p(f"s_add_u32 s{T0}, s{self.sXoff}, {rg*8192 + kc*128}")
                self.tokx[kc] = vm.op(f"buffer_load_dwordx4 v{self.vDXo if rg&1 else self.vDXe}, {sr(self.RX,4)}, s{T0} offen lds")
        p(f"""
        s_lshl_b32 s{T0}, s{self.sI}, 7
        s_add_u32 s{T1}, s{T0}, 1024
        s_cmp_eq_u32 s{self.sType}, 0
        s_cselect_b32 s{T1}, s{T1}, s{T0}
        """)
        srd(p, self.R0, self.SWQ, self.SWQ+1, 512*3072, add=T1)
        p(f"""
        s_add_u32 s{T1}, s{T0}, 2048
        s_lshl_b32 s{T2}, s{self.sU1}, 6
        s_cmp_eq_u32 s{self.sType}, 0
        s_cselect_b32 s{T1}, s{T1}, s{T2}
        s_cselect_b32 s{self.R1}, s{self.SWQ}, s{self.SW1}
        s_cselect_b32 s{self.R1+1}, s{self.SWQ+1}, s{self.SW1+1}
        s_lshl_b32 s{self.R1+2}, s{self.sStr1}, 9
        s_add_u32 s{self.R1}, s{self.R1}, s{T1}
        s_addc_u32 s{self.R1+1}, s{self.R1+1}, 0
        s_sub_u32 s{self.R1+2}, s{self.R1+2}, s{T1}
        s_mov_b32 s{self.R1+3}, 0x00020000
        s_lshl_b32 s{T1}, s{self.sU2}, 6
        """)
        srd(p, self.R2, self.SW1, self.SW1+1, 512*2752, add=T1)
        srd(p, self.RPHI, self.SPHI, self.SPHI+1, 32*512)
        p(f"""
        s_mov_b32 s{self.s8[0]}, {8*3072}
        s_lshl_b32 s{self.s8[1]}, s{self.sStr1}, 3
        s_mov_b32 s{self.s8[2]}, {8*2752}
        s_mul_i32 s{self.sO[0]}, s{W}, {32*3072}
        s_mul_i32 s{self.sO[1]}, s{W}, s{self.sStr1}
        s_lshl_b32 s{self.sO[1]}, s{self.sO[1]}, 5
        s_mul_i32 s{self.sO[2]}, s{W}, {64*2752}
        s_lshl_b32 s{self.sM0w}, s{W}, 12
        """)
        p(f"""
        v_lshrrev_b32 v{va}, 1, v{vrho}
        v_and_b32 v{va}, 1, v{va}
        v_lshlrev_b32 v{va}, 2, v{va}
        v_xor_b32 v{va}, v{va}, v{vq}
        v_lshlrev_b32 v{va}, 4, v{va}
        v_mul_u32_u24 v{vb}, 3072, v{vrho}
        v_add_u32 v{self.vDW[0]}, v{va}, v{vb}
        v_mul_u32_u24 v{vb}, s{self.sStr1}, v{vrho}
        v_add_u32 v{self.vDW[1]}, v{va}, v{vb}
        v_mul_u32_u24 v{vb}, 2752, v{vrho}
        v_add_u32 v{self.vDW[2]}, v{va}, v{vb}
        """)
        self.tokq = {}
        self.issue_quarter(0)
        p(f"""
        v_and_b32 v{va}, 31, v0
        v_lshrrev_b32 v{vb}, 5, v0
        v_lshrrev_b32 v{vc}, 3, v{va}
        v_lshlrev_b32 v{vc}, 10, v{vc}
        v_and_b32 v{vi}, 7, v{va}
        v_lshlrev_b32 v{vi}, 7, v{vi}
        v_add_u32 v{vc}, v{vc}, v{vi}
        s_lshl_b32 s{T0}, s{W}, 14
        v_add_u32 v{vc}, s{T0}, v{vc}
        v_lshrrev_b32 v{vi}, 1, v{va}
        v_and_b32 v{vi}, 7, v{vi}
        """)
        for m in range(4):
            p(f"v_add_u32 v{vg}, {2*m}, v{vb}")
            p(f"v_xor_b32 v{vg}, v{vg}, v{vi}")
            p(f"v_lshlrev_b32 v{vg}, 4, v{vg}")
            p(f"v_add_u32 v{self.vXr+m}, v{vc}, v{vg}")
        p(f"""
        v_and_b32 v{vi}, 15, v0
        v_lshrrev_b32 v{vg}, 4, v0
        v_lshrrev_b32 v{va}, 1, v{vg}
        v_lshlrev_b32 v{va}, 3, v{va}
        v_lshrrev_b32 v{vb}, 2, v{vi}
        v_add_u32 v{va}, v{va}, v{vb}
        v_lshlrev_b32 v{va}, 7, v{va}
        v_and_b32 v{vb}, 1, v{vg}
        v_lshlrev_b32 v{vb}, 5, v{vb}
        v_add_u32 v{va}, v{va}, v{vb}
        v_and_b32 v{vb}, 3, v{vi}
        v_lshlrev_b32 v{vb}, 3, v{vb}
        v_add_u32 v{va}, v{va}, v{vb}
        v_lshrrev_b32 v{vb}, 3, v{vi}
        v_lshlrev_b32 v{vb}, 6, v{vb}
        v_add_u32 v{self.vTr[0]}, v{va}, v{vb}
        v_xor_b32 v{self.vTr[1]}, 64, v{self.vTr[0]}
        """)
        p(f"""
        v_and_b32 v{va}, 15, v0
        v_lshrrev_b32 v{vb}, 5, v0
        v_lshlrev_b32 v{vb}, 4, v{vb}
        v_add_u32 v{va}, v{va}, v{vb}
        v_lshlrev_b32 v{va}, 4, v{va}
        v_bfe_u32 v{vb}, v0, 4, 1
        v_mul_u32_u24 v{vc}, {NU*1024}, v{vb}
        v_add_u32 v{self.vHs}, v{va}, v{vc}
        v_lshlrev_b32 v{vc}, 15, v{vb}
        v_add_u32 v{self.vEs}, v{va}, v{vc}
        s_lshl_b32 s{T0}, s{self.sR}, 3
        s_lshl_b32 s{T1}, s{W}, 1
        s_add_u32 s{T0}, s{T0}, s{T1}
        s_mul_i32 s{T1}, s{T0}, {NU*1024}
        s_add_u32 s{self.sHst}, s{T1}, {WS_H}
        s_lshl_b32 s{T1}, s{T0}, 15
        s_lshl_b32 s{T2}, s{self.sI}, 12
        s_add_u32 s{T1}, s{T1}, s{T2}
        s_add_u32 s{self.sEst}, s{T1}, {WS_E}
        v_mov_b32 v{self.vOnes}, 0x3f803f80
        v_mov_b32 v{self.vMask}, 0xffff0000
        v_mov_b32 v{self.vS1}, 0
        v_mov_b32 v{self.vS1+1}, 0
        v_mov_b32 v{self.vS2}, 0
        v_mov_b32 v{self.vS2+1}, 0
        """)

    def issue_quarter(self, q):
        p, vm = self.p, self.vm
        for d in range(2):
            R = [self.R0, self.R1][d]
            for n in range(4):
                p(f"s_add_u32 m0, s{self.sM0w}, {Q_BASE[q] + d*16384 + n*1024}")
                self.tokq[q] = vm.op(f"buffer_load_dwordx4 v{self.vDW[d]}, {sr(R,4)}, s{self.sO[d]} offen lds")
                p(f"s_add_u32 s{self.sO[d]}, s{self.sO[d]}, s{self.s8[d]}")
            p(f"s_mul_i32 s{self.sT0}, s{self.s8[d]}, 12")
            p(f"s_add_u32 s{self.sO[d]}, s{self.sO[d]}, s{self.sT0}")

    def issue_dt2(self, hf):
        p, vm = self.p, self.vm
        p(f"s_lshl_b32 s{self.sT1}, s{self.sM0w}, 1")
        for n in range(8):
            p(f"s_add_u32 m0, s{self.sT1}, {DT2_BASE[hf] + n*1024}")
            self.tokq[4+hf] = vm.op(f"buffer_load_dwordx4 v{self.vDW[2]}, {sr(self.R2,4)}, s{self.sO[2]} offen lds")
            p(f"s_add_u32 s{self.sO[2]}, s{self.sO[2]}, s{self.s8[2]}")
        p(f"s_add_u32 s{self.sO[2]}, s{self.sO[2]}, {192*2752}")

    def stats(self):
        p, vm = self.p, self.vm
        for kc in range(8):
            vm.wait(self.tokx[kc])
            for m in range(4):
                s = 4*kc + m
                p(f"ds_read_b128 {vr(self.vX+4*s,4)}, v{self.vXr+m} offset:{(kc&3)*4096}")
            if kc == 3:
                for m in range(4):
                    p(f"v_add_u32 v{self.vXr+m}, 0x10000, v{self.vXr+m}")
            p("s_waitcnt lgkmcnt(0)")
            if kc == 3:
                p("s_barrier")
                n = self.name
                p(f"""
                s_or_b32 s{self.sT0}, s{self.sR}, s{self.sType}
                s_or_b32 s{self.sT0}, s{self.sT0}, s{self.sW}
                s_cmp_lg_u32 s{self.sT0}, 0
                s_cbranch_scc1 L_{n}_noflag
                s_lshl_b32 s{self.sT0}, s{self.sI}, 2
                v_mov_b32 v{self.vT}, 1
                s_mov_b64 s[{self.sEX}:{self.sEX+1}], exec
                s_mov_b64 exec, 1
                buffer_store_dword v{self.vT}, off, {sr(self.RDBG,4)}, s{self.sT0} sc1
                s_mov_b64 exec, s[{self.sEX}:{self.sEX+1}]
                L_{n}_noflag:
                """)
                self.issue_quarter(1); self.issue_quarter(2)
            if kc == 7:
                p("s_barrier")
                self.issue_quarter(3); self.issue_dt2(0)
            for r in range(16):
                x = self.vX + 16*kc + r
                p(f"v_dot2c_f32_bf16 v{self.vS1+(r&1)}, v{x}, v{self.vOnes}")
                p(f"v_dot2c_f32_bf16 v{self.vS2+(r&1)}, v{x}, v{x}")
        t = self.vT
        S1, S2 = self.vS1, self.vS2
        p(f"""
        v_add_f32 v{S1}, v{S1}, v{S1+1}
        v_add_f32 v{S2}, v{S2}, v{S2+1}
        v_mov_b32 v{S1+1}, v{S1}
        v_mov_b32 v{S2+1}, v{S2}
        v_permlane32_swap_b32 v{S1}, v{S1+1}
        v_permlane32_swap_b32 v{S2}, v{S2+1}
        v_add_f32 v{S1}, v{S1}, v{S1+1}
        v_add_f32 v{S2}, v{S2}, v{S2+1}
        v_mul_f32 v{S1}, {hx(1/512)}, v{S1}
        v_mul_f32 v{S2}, {hx(1/512)}, v{S2}
        v_fma_f32 v{S2}, -v{S1}, v{S1}, v{S2}
        v_max_f32 v{S2}, 0, v{S2}
        v_add_f32 v{S2}, {hx(1e-5)}, v{S2}
        v_rsq_f32 v{S2}, v{S2}
        v_mul_f32 v{self.vRstd}, {hx(LAMBDA)}, v{S2}
        v_mul_f32 v{self.vC0}, v{S1}, v{self.vRstd}
        v_sub_f32 v{self.vC0}, 0, v{self.vC0}
        """)

    def norm_step(self, s):
        out = []
        t = self.vT
        for r in range(4):
            x = self.vX + 4*s + r
            lo, hi = t + 2*(r&1), t + 2*(r&1) + 1
            out += [f"v_lshlrev_b32 v{lo}, 16, v{x}",
                    f"v_and_b32 v{hi}, v{self.vMask}, v{x}",
                    f"v_fma_f32 v{lo}, v{lo}, v{self.vRstd}, v{self.vC0}",
                    f"v_fma_f32 v{hi}, v{hi}, v{self.vRstd}, v{self.vC0}",
                    f"v_cvt_pk_bf16_f32 v{x}, v{lo}, v{hi}"]
        return out

    def set_region(self, base):
        return [f"v_add_u32 v{self.vTc[0]}, {base}, v{self.vTr[0]}",
                f"v_add_u32 v{self.vTc[1]}, {base}, v{self.vTr[1]}"]

    def w_reads1(self, s, buf):
        sl = s & 7
        out = []
        for tI in range(4):
            d, th = tI >> 1, tI & 1
            a = self.aW + 16*buf + 4*tI
            off = d*16384 + sl*2048
            out.append(f"ds_read_b64_tr_b16 {ar(a,2)}, v{self.vTc[th]} offset:{off}")
            out.append(f"ds_read_b64_tr_b16 {ar(a+2,2)}, v{self.vTc[th]} offset:{off+512}")
        return out
    def w_reads2(self, s, buf):
        sl = s & 15
        out = []
        for th in range(2):
            a = self.aW + 16*buf + 4*th
            off = sl*2048
            out.append(f"ds_read_b64_tr_b16 {ar(a,2)}, v{self.vTc[th]} offset:{off}")
            out.append(f"ds_read_b64_tr_b16 {ar(a+2,2)}, v{self.vTc[th]} offset:{off+512}")
        return out

    def pass1(self):
        p, vm = self.p, self.vm
        vm.wait(self.tokq[0])
        p("s_barrier")
        for x in self.set_region(Q_BASE[0]): p(x)
        for x in self.w_reads1(0, 0): p(x)
        for x in self.norm_step(0): p(x)
        for s in range(32):
            buf = s & 1
            pre = []
            if s + 1 < 32 and (s + 1) % 8 == 0:
                q = (s + 1) // 8
                vm.wait(self.tokq[q], "lgkmcnt(0)")
                p("s_barrier")
                for x in self.set_region(Q_BASE[q]): p(x)
                if q == 1:
                    self.issue_dt2(1)
                if q == 2:
                    self.issue_phi()
            else:
                p("s_waitcnt lgkmcnt(0)")
            if s == 31:
                vm.wait(self.tokq[4])
                p("s_barrier")
                for x in self.set_region(DT2_BASE[0]): p(x)
            rds = self.w_reads1(s+1, buf^1) if s + 1 < 32 else self.w_reads2(0, buf^1)
            nrm = self.norm_step(s+1) if s + 1 < 32 else []
            mf = []
            for tI in range(4):
                acc = vr(self.vAcc1 + 16*tI, 16)
                mf.append(f"v_mfma_f32_32x32x16_bf16 {acc}, {ar(self.aW+16*buf+4*tI,4)}, {vr(self.vX+4*s,4)}, {acc if s else 0}")
            for tI in range(4):
                p(mf[tI])
                for x in rds[2*tI:2*tI+2]: p(x)
                for x in nrm[5*tI:5*tI+5]: p(x)

    def issue_phi(self):
        p, vm, n = self.p, self.vm, self.name
        t = self.vT + 8
        p(f"""
        v_mov_b32 v{t}, 0
        v_mov_b32 v{t+1}, 0
        v_lshlrev_b32 v{t+2}, 3, v0
        s_lshl_b32 s{self.sT0}, s{self.sW}, 9
        v_add_u32 v{t+2}, s{self.sT0}, v{t+2}
        ds_write_b64 v{t+2}, v[{t}:{t+1}] offset:{ZERO_W}
        v_mov_b32 v{t+3}, 0x3f80
        v_mov_b32 v{t+4}, 0
        v_mov_b32 v{t+5}, 0
        v_mov_b32 v{t+6}, 0
        v_mov_b32 v{t+2}, {CONST_V}
        """)
        q = self.vT + 12
        p(f"""
        v_mov_b32 v{q}, 0x3f80
        v_mov_b32 v{q+1}, 0
        v_mov_b32 v{q+2}, 0
        v_mov_b32 v{q+3}, 0
        ds_write_b128 v{t+2}, v[{q}:{q+3}]
        s_lshl_b32 s{self.sT0}, s{self.sI}, 11
        s_and_b32 s{self.sT1}, s{self.sW}, 1
        s_lshl_b32 s{self.sT1}, s{self.sT1}, 10
        s_add_u32 s{self.sT0}, s{self.sT0}, s{self.sT1}
        s_add_u32 m0, s{self.sT1}, {PHI_W}
        v_lshlrev_b32 v{t}, 4, v0
        """)
        self.tok_phi = vm.op(f"buffer_load_dwordx4 v{t}, {sr(self.RPHI,4)}, s{self.sT0} offen lds")

    def read_phi(self):
        p = self.p
        t = self.vT
        vi, vg, va, vb = t, t+1, t+2, t+3
        p(f"""
        v_and_b32 v{vi}, 15, v0
        v_lshrrev_b32 v{vg}, 4, v0
        v_lshrrev_b32 v{va}, 1, v{vg}
        v_lshlrev_b32 v{va}, 2, v{va}
        v_lshrrev_b32 v{vb}, 2, v{vi}
        v_add_u32 v{va}, v{va}, v{vb}
        v_lshlrev_b32 v{va}, 5, v{va}
        v_and_b32 v{vb}, 3, v{vi}
        v_lshlrev_b32 v{vb}, 3, v{vb}
        v_add_u32 v{va}, v{va}, v{vb}
        v_and_b32 v{vb}, 1, v{vg}
        v_lshlrev_b32 v{vg}, 11, v{vb}
        v_add_u32 v{self.vPhA}, v{va}, v{vg}
        v_xor_b32 v{vb}, 1, v{vb}
        v_lshlrev_b32 v{vg}, 11, v{vb}
        v_add_u32 v{self.vPhB}, v{va}, v{vg}
        v_add_u32 v{self.vPhB}, 512, v{self.vPhB}
        """)
        for tI in range(2):
            for k in range(2):
                p(f"ds_read_b64_tr_b16 {ar(self.aPhi+8*tI+2*k,2)}, v{self.vPhA} offset:{PHI_W + tI*1024 + k*256}")
                p(f"ds_read_b64_tr_b16 {ar(self.aPhi+8*tI+4+2*k,2)}, v{self.vPhB} offset:{PHI_W + tI*1024 + k*256}")

    def pass2(self):
        p, vm = self.p, self.vm
        for s in range(32):
            buf = s & 1
            if s == 15:
                vm.wait(self.tokq[5], "lgkmcnt(0)")
                p("s_barrier")
                for x in self.set_region(DT2_BASE[1]): p(x)
            else:
                p("s_waitcnt lgkmcnt(0)")
            rds = self.w_reads2(s+1, buf^1) if s + 1 < 32 else []
            for th in range(2):
                acc = ar(self.aAcc2 + 16*th, 16)
                p(f"v_mfma_f32_32x32x16_bf16 {acc}, {ar(self.aW+16*buf+4*th,4)}, {vr(self.vX+4*s,4)}, {acc if s else 0}")
                for x in rds[2*th:2*th+2]: p(x)

    def phi_mfma(self, tI):
        A = self.vAcc1 + 16*tI
        pk = self.vT
        out = []
        for q in range(8):
            out.append(f"v_cvt_pk_bf16_f32 v{pk+q}, v{A+2*q}, v{A+2*q+1}")
        out.append(f"v_mfma_f32_32x32x16_bf16 {vr(A,16)}, {ar(self.aPhi+8*tI,4)}, {vr(pk,4)}, 0")
        out.append(f"v_mfma_f32_32x32x16_bf16 {vr(A,16)}, {ar(self.aPhi+8*tI+4,4)}, {vr(pk+4,4)}, {vr(A,16)}")
        return out

    def minmax(self, P, mn, mx, t):
        return [f"v_max3_f32 v{mx}, v{P}, v{P+1}, v{P+2}",
                f"v_min3_f32 v{mn}, v{P}, v{P+1}, v{P+2}",
                f"v_max3_f32 v{mx}, v{mx}, v{P+3}, v{P+4}",
                f"v_min3_f32 v{mn}, v{mn}, v{P+3}, v{P+4}",
                f"v_max3_f32 v{mx}, v{mx}, v{P+5}, v{P+6}",
                f"v_min3_f32 v{mn}, v{mn}, v{P+5}, v{P+6}",
                f"v_max_f32 v{mx}, v{mx}, v{P+7}",
                f"v_min_f32 v{mn}, v{mn}, v{P+7}",
                f"v_mov_b32 v{t}, v{mx}",
                f"v_mov_b32 v{t+1}, v{mn}",
                f"v_permlane32_swap_b32 v{mx}, v{t}",
                f"v_permlane32_swap_b32 v{mn}, v{t+1}",
                f"v_max_f32 v{mx}, v{mx}, v{t}",
                f"v_min_f32 v{mn}, v{mn}, v{t+1}"]

    def exps(self, P, E, mn, mx):
        out = []
        for i in range(8):
            out.append(f"v_sub_f32 v{E+i}, v{mn}, v{P+i}")
            out.append(f"v_sub_f32 v{P+i}, v{P+i}, v{mx}")
        for i in range(8):
            out.append(f"v_exp_f32 v{E+i}, v{E+i}")
            out.append(f"v_exp_f32 v{P+i}, v{P+i}")
        return out

    def q_head(self, tI, hd):
        P = self.vAcc1 + 16*tI + 8*hd
        E, mn, mx, t = self.vT, self.vT+8, self.vT+9, self.vT+10
        o = self.vT + 12
        out = self.minmax(P, mn, mx, t) + self.exps(P, E, mn, mx)
        for q in range(4): out.append(f"v_cvt_pk_bf16_f32 v{o+q}, v{E+2*q}, v{E+2*q+1}")
        for q in range(4): out.append(f"v_cvt_pk_bf16_f32 v{o+4+q}, v{P+2*q}, v{P+2*q+1}")
        head = 2*tI + hd
        out.append(f"s_add_u32 s{self.sT0}, s{self.sEst}, {head*1024}")
        out.append(("vm", f"buffer_store_dwordx4 {vr(o,4)}, v{self.vEs}, {sr(self.RWS,4)}, s{self.sT0} offen"))
        out.append(("vm", f"buffer_store_dwordx4 {vr(o+4,4)}, v{self.vEs}, {sr(self.RWS,4)}, s{self.sT0} offen offset:512"))
        return out

    def k_head(self, tI, hd):
        P = self.vAcc1 + 16*tI + 8*hd
        E, mn, mx, t = self.vT, self.vT+8, self.vT+9, self.vT+10
        o = self.vT + 12
        out = self.minmax(P, mn, mx, t) + self.exps(P, E, mn, mx)
        sp, sn = mn, mx
        out += [f"v_add_f32 v{sp}, v{E}, v{E+1}", f"v_add_f32 v{sn}, v{P}, v{P+1}"]
        for i in range(2, 8):
            out += [f"v_add_f32 v{sp}, v{sp}, v{E+i}", f"v_add_f32 v{sn}, v{sn}, v{P+i}"]
        out += [f"v_mov_b32 v{t}, v{sp}", f"v_mov_b32 v{t+1}, v{sn}",
                f"v_permlane32_swap_b32 v{sp}, v{t}", f"v_permlane32_swap_b32 v{sn}, v{t+1}",
                f"v_add_f32 v{sp}, v{sp}, v{t}", f"v_add_f32 v{sn}, v{sn}, v{t+1}",
                f"v_rcp_f32 v{sp}, v{sp}", f"v_rcp_f32 v{sn}, v{sn}"]
        for i in range(8):
            out += [f"v_mul_f32 v{E+i}, v{E+i}, v{sp}", f"v_mul_f32 v{P+i}, v{P+i}, v{sn}"]
        for q in range(4): out.append(f"v_cvt_pk_bf16_f32 v{o+q}, v{E+2*q}, v{E+2*q+1}")
        for q in range(4): out.append(f"v_cvt_pk_bf16_f32 v{o+4+q}, v{P+2*q}, v{P+2*q+1}")
        head = 2*tI + hd
        out.append(f"ds_write_b128 v{self.vPkP}, {vr(o,4)} offset:{head*8192}")
        out.append(f"ds_write_b128 v{self.vPkN}, {vr(o+4,4)} offset:{head*8192}")
        return out

    def v_tile(self, tI):
        A = self.vAcc1 + 16*(2+tI)
        o = self.vT + 12
        out = []
        for q in range(8): out.append(f"v_cvt_pk_bf16_f32 v{o+q}, v{A+2*q}, v{A+2*q+1}")
        out.append(f"ds_write_b128 v{self.vVw}, {vr(o,4)} offset:{(2*tI)*4096}")
        out.append(f"ds_write_b128 v{self.vVw}, {vr(o+4,4)} offset:{(2*tI+1)*4096}")
        return out

    def silu_tile(self, A, unit_sreg, unit_add):
        t = self.vT
        o = self.vT + 16
        out = []
        for i in range(16): out.append(f"v_exp_f32 v{t+i}, v{A+i}")
        for i in range(16): out.append(f"v_add_f32 v{t+i}, 1.0, v{t+i}")
        for i in range(16): out.append(f"v_rcp_f32 v{t+i}, v{t+i}")
        for i in range(16): out.append(f"v_mul_f32 v{t+i}, v{t+i}, v{A+i}")
        for q in range(8): out.append(f"v_cvt_pk_bf16_f32 v{o+q}, v{t+2*q}, v{t+2*q+1}")
        out.append(f"s_add_u32 s{self.sT0}, s{unit_sreg}, {unit_add}")
        out.append(f"s_lshl_b32 s{self.sT0}, s{self.sT0}, 10")
        out.append(f"s_add_u32 s{self.sT0}, s{self.sT0}, s{self.sHst}")
        out.append(("vm", f"buffer_store_dwordx4 {vr(o,4)}, v{self.vHs}, {sr(self.RWS,4)}, s{self.sT0} offen"))
        out.append(("vm", f"buffer_store_dwordx4 {vr(o+4,4)}, v{self.vHs}, {sr(self.RWS,4)}, s{self.sT0} offen offset:512"))
        return out

    def acc2_to_v(self, th, dst):
        return [f"v_accvgpr_read_b32 v{dst+i}, a{self.aAcc2+16*th+i}" for i in range(16)]

    def emit(self, lst):
        for x in lst:
            if isinstance(x, tuple): self.vm.op(x[1])
            else: self.p(x)

    def typeA(self):
        p, vm, n = self.p, self.vm, self.name
        t = self.vT
        self.vPkP, self.vPkN, self.vVw = 1, 2, 3
        self.vBa, self.vBb, self.vAa, self.vAb, self.vAi, self.vAt = 4, 5, 6, 7, 8, 9
        va, vb, vc, vi, vg = t, t+1, t+2, t+3, t+4
        p(f"""
        v_and_b32 v{va}, 31, v0
        s_lshl_b32 s{self.sT0}, s{self.sW}, 5
        v_add_u32 v{va}, s{self.sT0}, v{va}
        v_lshrrev_b32 v{vb}, 5, v0
        v_lshrrev_b32 v{vc}, 1, v{va}
        v_and_b32 v{vc}, 3, v{vc}
        v_xor_b32 v{vi}, v{vb}, v{vc}
        v_lshlrev_b32 v{vi}, 4, v{vi}
        v_lshlrev_b32 v{vg}, 6, v{va}
        v_add_u32 v{vg}, {PHIK}, v{vg}
        v_add_u32 v{self.vPkP}, v{vg}, v{vi}
        v_xor_b32 v{vi}, 32, v{vi}
        v_add_u32 v{self.vPkN}, v{vg}, v{vi}
        v_lshrrev_b32 v{vc}, 2, v{va}
        v_and_b32 v{vc}, 1, v{vc}
        v_xor_b32 v{vc}, v{vc}, v{vb}
        v_lshlrev_b32 v{vc}, 4, v{vc}
        v_lshlrev_b32 v{vg}, 5, v{va}
        v_add_u32 v{vg}, v{vg}, v{vc}
        v_add_u32 v{self.vVw}, {VREG}, v{vg}
        """)
        p(f"s_lshl_b32 s{self.sT0}, s{self.sI}, 2")
        tok_poll = vm.op(f"buffer_load_dword v{self.vPoll}, off, {sr(self.RDBG,4)}, s{self.sT0} sc1")
        for tI in range(2):
            self.emit(self.phi_mfma(tI))
            for hd in range(2): self.emit(self.k_head(tI, hd))
        for tI in range(2): self.emit(self.v_tile(tI))
        p("s_waitcnt lgkmcnt(0)")
        p("s_barrier")
        p(f"""
        v_and_b32 v{vi}, 15, v0
        v_lshrrev_b32 v{vg}, 4, v0
        v_lshrrev_b32 v{va}, 1, v{vg}
        v_lshlrev_b32 v{va}, 3, v{va}
        v_lshrrev_b32 v{vb}, 2, v{vi}
        v_add_u32 v{va}, v{va}, v{vb}
        v_lshlrev_b32 v{t+5}, 6, v{va}
        v_and_b32 v{vb}, 1, v{vg}
        v_lshlrev_b32 v{vb}, 1, v{vb}
        v_bfe_u32 v{vc}, v{vi}, 1, 1
        v_add_u32 v{vb}, v{vb}, v{vc}
        v_lshrrev_b32 v{vc}, 3, v{vi}
        v_xor_b32 v{vb}, v{vb}, v{vc}
        v_and_b32 v{vc}, 1, v{vi}
        v_lshlrev_b32 v{vc}, 3, v{vc}
        v_add_u32 v{t+5}, v{t+5}, v{vc}
        s_lshl_b32 s{self.sT0}, s{self.sW}, 13
        s_add_u32 s{self.sT0}, s{self.sT0}, {PHIK}
        v_add_u32 v{t+5}, s{self.sT0}, v{t+5}
        v_lshlrev_b32 v{vc}, 4, v{vb}
        v_add_u32 v{self.vBa}, v{t+5}, v{vc}
        v_xor_b32 v{vb}, 2, v{vb}
        v_lshlrev_b32 v{vc}, 4, v{vb}
        v_add_u32 v{self.vBb}, v{t+5}, v{vc}
        v_add_u32 v{self.vBb}, 256, v{self.vBb}
        """)
        p(f"""
        v_lshlrev_b32 v{t+5}, 5, v{va}
        v_and_b32 v{vc}, 3, v{vi}
        v_lshlrev_b32 v{vc}, 3, v{vc}
        s_lshl_b32 s{self.sT0}, s{self.sW}, 12
        s_add_u32 s{self.sT0}, s{self.sT0}, {VREG}
        v_add_u32 v{t+5}, s{self.sT0}, v{t+5}
        v_add_u32 v{self.vAa}, v{t+5}, v{vc}
        v_xor_b32 v{vc}, 16, v{vc}
        v_add_u32 v{self.vAb}, v{t+5}, v{vc}
        v_add_u32 v{self.vAb}, 128, v{self.vAb}
        v_and_b32 v{vc}, 3, v{vi}
        v_cmp_eq_u32 vcc, 0, v{vc}
        v_mov_b32 v{t+6}, {CONST_V+8}
        v_mov_b32 v{t+7}, {CONST_V}
        v_cndmask_b32 v{t+6}, v{t+6}, v{t+7}, vcc
        v_and_b32 v{vc}, 1, v{vg}
        v_cmp_eq_u32 vcc, 1, v{vc}
        v_cndmask_b32 v{self.vAa}, v{self.vAa}, v{t+6}, vcc
        v_cndmask_b32 v{self.vAb}, v{self.vAb}, v{t+6}, vcc
        v_mov_b32 v{t+7}, 512
        v_cndmask_b32 v{self.vAi}, v{t+7}, 0, vcc
        """)
        D = self.vAcc1
        fa, fb = t+8, t+12
        for s in range(8):
            p(f"ds_read_b64_tr_b16 {vr(fa,2)}, v{self.vAa}")
            p(f"ds_read_b64_tr_b16 {vr(fa+2,2)}, v{self.vAb}")
            p(f"ds_read_b64_tr_b16 {vr(fb,2)}, v{self.vBa} offset:{s*1024}")
            p(f"ds_read_b64_tr_b16 {vr(fb+2,2)}, v{self.vBb} offset:{s*1024}")
            p(f"v_add_u32 v{self.vAa}, v{self.vAa}, v{self.vAi}")
            p(f"v_add_u32 v{self.vAb}, v{self.vAb}, v{self.vAi}")
            p("s_waitcnt lgkmcnt(0)")
            p(f"v_mfma_f32_32x32x16_bf16 {vr(D,16)}, {vr(fa,4)}, {vr(fb,4)}, {vr(D,16) if s else 0}")
        vm.wait(tok_poll)
        p(f"""
        v_readfirstlane_b32 s{self.sT0}, v{self.vPoll}
        s_cmp_lg_u32 s{self.sT0}, 0
        s_cbranch_scc1 L_{n}_zok
        s_mov_b32 s{self.sT1}, 0
        L_{n}_zspin:
        s_sleep 2
        s_lshl_b32 s{self.sT0}, s{self.sI}, 2
        buffer_load_dword v{self.vPoll}, off, {sr(self.RDBG,4)}, s{self.sT0} sc1
        s_waitcnt vmcnt(0)
        v_readfirstlane_b32 s{self.sT0}, v{self.vPoll}
        s_add_u32 s{self.sT1}, s{self.sT1}, 1
        s_cmp_ge_u32 s{self.sT1}, 0x100000
        s_cbranch_scc1 L_{n}_zok
        s_cmp_eq_u32 s{self.sT0}, 0
        s_cbranch_scc1 L_{n}_zspin
        L_{n}_zok:
        v_lshrrev_b32 v{va}, 5, v0
        v_lshlrev_b32 v{va}, 9, v{va}
        v_and_b32 v{vb}, 31, v0
        v_lshlrev_b32 v{vb}, 2, v{vb}
        v_add_u32 v{va}, v{va}, v{vb}
        """)
        for r in range(8):
            vm.op(f"buffer_atomic_add_f32 v{D+r}, v{va}, {sr(self.RWS,4)}, s{self.sKVst} offen offset:{(r&3)*128 + (r>>2)*1024}")
        p(f"s_mov_b64 s[{self.sEX}:{self.sEX+1}], exec")
        p("s_mov_b32 exec_hi, 0")
        vm.op(f"buffer_atomic_add_f32 v{D+8}, v{va}, {sr(self.RWS,4)}, s{self.sKVst} offen offset:2048")
        p(f"s_mov_b64 exec, s[{self.sEX}:{self.sEX+1}]")
        for th in range(2):
            A = self.vAcc1 + 16 + 16*th
            self.emit(self.acc2_to_v(th, A))
            self.emit(self.silu_tile(A, self.sU2, th))

    def typeB(self):
        for tI in range(2):
            self.emit(self.phi_mfma(tI))
            for hd in range(2): self.emit(self.q_head(tI, hd))
        for th in range(2):
            self.emit(self.silu_tile(self.vAcc1 + 32 + 16*th, self.sU1, th))
        for th in range(2):
            A = self.vAcc1 + 16*th
            self.emit(self.acc2_to_v(th, A))
            self.emit(self.silu_tile(A, self.sU2, th))

    def gen(self):
        p, n = self.p, self.name
        self.prologue()
        self.stats()
        self.pass1()
        self.pass2()
        self.vm.wait(self.tok_phi)
        p("s_barrier")
        self.read_phi()
        p("s_waitcnt lgkmcnt(0)")
        p(f"s_cmp_eq_u32 s{self.sType}, 0")
        p(f"s_cbranch_scc0 L_{n}_typeB")
        save = self.vm.n
        self.typeA()
        p("s_endpgm")
        p(f"L_{n}_typeB:")
        self.vm.n = save
        self.typeB()
        p(f"L_{n}_end:")
        p("s_endpgm")
        k = p.fix_hazards()
        text = kernel_head(n) + p.text() + kernel_desc(n, 256 + 80, 96, 256) + ".text\n"
        return text, LDS_K1, k

def gen_k1(): return K1().gen()
if __name__ == "__main__":
    t, lds, n = gen_k1()
    print(t); print("; lds", lds, "nops", n)
```

```python
from fw import *
from common import *

def srd(p, s, base_lo, base_hi, size, add=None):
    if add is None:
        p(f"s_mov_b32 s{s}, s{base_lo}")
        p(f"s_mov_b32 s{s+1}, s{base_hi}")
        p(f"s_mov_b32 s{s+2}, {size}")
    else:
        p(f"s_add_u32 s{s}, s{base_lo}, s{add}")
        p(f"s_addc_u32 s{s+1}, s{base_hi}, 0")
        p(f"s_sub_u32 s{s+2}, {size}, s{add}")
    p(f"s_mov_b32 s{s+3}, 0x00020000")

def gen_k2(D=4, name="k2_kernel"):
    p = Prog()
    vm = VmTrack(p)
    NSLOT = D + 1
    LDS = NSLOT * 16384
    SX, SWO, SW2, SOUT, SDBG, SWS = 16, 22, 28, 30, 32, 34
    RWS, RW2, RWO, RX, ROUT, RDBG = 36, 40, 44, 48, 52, 56
    sCT, sTB64, sW, sTB16, sT0, sT1 = 60, 61, 62, 63, 64, 65
    sBoff, sAoff, sM0 = 66, 67, 68
    sEoff, sKV, sOst, sXoff = 69, 70, 71, 72
    sOld = 73
    sEX = 74
    vL16 = 1
    vDW2, vDWO = 2, 3
    vA2 = 4
    vAO = 12
    vXo = 20
    vKVo, vZo = 21, 22
    vMp, vMn, vM1, vM2 = 23, 24, 25, 26
    vPoll = 27
    vT = 28
    vAccG, vAccS = 64, 80
    vAf = 96
    vXin = 128
    vTmp2 = 136
    aB = 0

    p(f"s_cmp_ge_u32 s2, 256")
    p(f"s_cbranch_scc1 L_{name}_end")
    p("s_load_dwordx16 s[16:31], s[0:1], 0")
    p("s_load_dwordx4 s[32:35], s[0:1], 64")
    p(f"""
    s_and_b32 s{sT0}, s2, 7
    s_lshr_b32 s{sT1}, s2, 3
    s_and_b32 s{sCT}, s{sT1}, 7
    s_lshr_b32 s{sT1}, s{sT1}, 3
    s_lshl_b32 s{sT0}, s{sT0}, 2
    s_add_u32 s{sTB64}, s{sT0}, s{sT1}
    v_lshrrev_b32 v{vT}, 6, v0
    v_and_b32 v0, 63, v0
    v_readfirstlane_b32 s{sW}, v{vT}
    v_lshlrev_b32 v{vL16}, 4, v0
    s_lshl_b32 s{sT0}, s{sTB64}, 2
    s_add_u32 s{sTB16}, s{sT0}, s{sW}
    """)
    vi, vg, vrho, vq, va, vb, vc = vT, vT+1, vT+2, vT+3, vT+4, vT+5, vT+6
    p(f"""
    v_and_b32 v{vi}, 15, v0
    v_lshrrev_b32 v{vg}, 4, v0
    v_lshrrev_b32 v{vrho}, 3, v0
    v_and_b32 v{vq}, 7, v0
    """)
    p(f"""
    v_lshrrev_b32 v{va}, 1, v{vrho}
    v_and_b32 v{va}, 3, v{va}
    v_lshlrev_b32 v{va}, 1, v{va}
    v_xor_b32 v{va}, v{va}, v{vq}
    v_lshlrev_b32 v{va}, 4, v{va}
    v_lshlrev_b32 v{vb}, 10, v{vrho}
    v_add_u32 v{vDW2}, v{va}, v{vb}
    """)
    p(f"""
    s_and_b32 s{sT0}, s{sW}, 1
    s_lshl_b32 s{sT0}, s{sT0}, 1
    v_lshrrev_b32 v{va}, 1, v{vrho}
    v_and_b32 v{va}, 1, v{va}
    v_or_b32 v{va}, s{sT0}, v{va}
    v_lshlrev_b32 v{va}, 1, v{va}
    v_xor_b32 v{va}, v{va}, v{vq}
    v_lshlrev_b32 v{va}, 4, v{va}
    v_add_u32 v{vDWO}, v{va}, v{vb}
    """)
    p(f"""
    v_lshrrev_b32 v{va}, 1, v{vg}
    v_lshlrev_b32 v{va}, 4, v{va}
    v_and_b32 v{vb}, 1, v{vg}
    v_lshlrev_b32 v{vc}, 2, v{vb}
    v_add_u32 v{va}, v{va}, v{vc}
    v_lshrrev_b32 v{vc}, 2, v{vi}
    v_add_u32 v{va}, v{va}, v{vc}
    v_lshlrev_b32 v{va}, 7, v{va}
    v_and_b32 v{vc}, 3, v{vi}
    v_lshlrev_b32 v{vc}, 3, v{vc}
    v_add_u32 v{va}, v{va}, v{vc}
    v_lshlrev_b32 v{vb}, 1, v{vb}
    v_lshrrev_b32 v{vc}, 3, v{vi}
    v_add_u32 v{vb}, v{vb}, v{vc}
    v_lshlrev_b32 v{vb}, 5, v{vb}
    """)
    for j in range(4):
        p(f"v_xor_b32 v{vc}, {j*32}, v{vb}")
        p(f"v_add_u32 v{vA2+j}, v{va}, v{vc}")
        p(f"v_add_u32 v{vA2+4+j}, 0x10000, v{vA2+j}")
    p(f"""
    v_and_b32 v{va}, 1, v{vg}
    v_lshlrev_b32 v{va}, 3, v{va}
    v_lshrrev_b32 v{vc}, 1, v{vg}
    v_lshlrev_b32 v{vc}, 2, v{vc}
    v_add_u32 v{va}, v{va}, v{vc}
    v_lshrrev_b32 v{vc}, 2, v{vi}
    v_add_u32 v{va}, v{va}, v{vc}
    v_lshlrev_b32 v{va}, 7, v{va}
    v_and_b32 v{vc}, 3, v{vi}
    v_lshlrev_b32 v{vc}, 3, v{vc}
    v_add_u32 v{va}, v{va}, v{vc}
    """)
    for j in range(4):
        p(f"v_xor_b32 v{vc}, {j*32}, v{vb}")
        p(f"v_add_u32 v{vAO+j}, v{va}, v{vc}")
        p(f"v_add_u32 v{vAO+4+j}, 0x10000, v{vAO+j}")
    p(f"""
    v_lshlrev_b32 v{va}, 7, v{vi}
    v_lshlrev_b32 v{vb}, 5, v{vg}
    v_add_u32 v{vKVo}, v{va}, v{vb}
    v_add_u32 v{vZo}, 2048, v{vb}
    """)
    p(f"""
    v_cmp_gt_u32 vcc, 2, v{vg}
    v_cndmask_b32 v{vMp}, 0, -1, vcc
    v_not_b32 v{vMn}, v{vMp}
    v_and_b32 v{va}, 3, v{vi}
    v_cmp_eq_u32 vcc, 0, v{va}
    v_cndmask_b32 v{vM1}, 0, v{vMp}, vcc
    v_cmp_eq_u32 vcc, 1, v{va}
    v_cndmask_b32 v{vM1}, v{vM1}, v{vMn}, vcc
    v_cmp_eq_u32 vcc, 2, v{va}
    v_cndmask_b32 v{vM2}, 0, v{vMp}, vcc
    v_cmp_eq_u32 vcc, 3, v{va}
    v_cndmask_b32 v{vM2}, v{vM2}, v{vMn}, vcc
    v_and_b32 v{vM2}, 0x3f803f80, v{vM2}
    """)
    p(f"""
    s_lshl_b32 s{sT0}, s{sTB16}, 14
    s_lshl_b32 s{sT1}, s{sCT}, 7
    s_add_u32 s{sXoff}, s{sT0}, s{sT1}
    v_lshlrev_b32 v{va}, 10, v{vi}
    v_lshlrev_b32 v{vb}, 3, v{vg}
    v_add_u32 v{vXo}, v{va}, v{vb}
    """)
    p("s_waitcnt lgkmcnt(0)")
    srd(p, RWS, SWS, SWS+1, WS_USED)
    p(f"s_lshl_b32 s{sT1}, s{sCT}, 7")
    srd(p, RW2, SW2, SW2+1, FF*1024, add=sT1)
    srd(p, RWO, SWO, SWO+1, 512*1024, add=sT1)
    srd(p, RX, SX, SX+1, S_TOK*1024)
    srd(p, ROUT, SOUT, SOUT+1, S_TOK*1024)
    srd(p, RDBG, SDBG, SDBG+1, 256)
    p(f"""
    s_mul_i32 s{sBoff}, s{sTB16}, {NU*1024}
    s_lshl_b32 s{sT0}, s{sTB16}, 15
    s_lshl_b32 s{sT1}, s{sCT}, 12
    s_add_u32 s{sEoff}, s{sT0}, s{sT1}
    s_add_u32 s{sEoff}, s{sEoff}, {WS_E}
    s_mul_i32 s{sKV}, s{sCT}, {4*KV_HEAD}
    s_add_u32 s{sKV}, s{sKV}, {WS_KV}
    s_lshl_b32 s{sT0}, s{sTB16}, 14
    s_add_u32 s{sOld}, s{sT0}, {WS_O}
    s_lshl_b32 s{sT1}, s{sCT}, 11
    s_add_u32 s{sOst}, s{sOld}, s{sT1}
    s_lshl_b32 s{sAoff}, s{sW}, 13
    """)
    vE = vTmp2
    vKV = vTmp2 + 16
    vZ = vTmp2 + 48
    tok_a = None
    for hh in range(4):
        vm.op(f"buffer_load_dwordx4 {vr(vE+4*hh,4)}, v{vL16}, {sr(RWS,4)}, s{sEoff} offen offset:{hh*1024}")
    for hh in range(4):
        p(f"s_add_u32 s{sT0}, s{sKV}, {hh*KV_HEAD}")
        vm.op(f"buffer_load_dwordx4 {vr(vKV+8*hh,4)}, v{vKVo}, {sr(RWS,4)}, s{sT0} offen sc1")
        vm.op(f"buffer_load_dwordx4 {vr(vKV+8*hh+4,4)}, v{vKVo}, {sr(RWS,4)}, s{sT0} offen offset:16 sc1")
        vm.op(f"buffer_load_dwordx4 {vr(vZ+8*hh,4)}, v{vZo}, {sr(RWS,4)}, s{sT0} offen sc1")
        tok_a = vm.op(f"buffer_load_dwordx4 {vr(vZ+8*hh+4,4)}, v{vZo}, {sr(RWS,4)}, s{sT0} offen offset:16 sc1")
    groups = []
    s = 0
    for g in range(10): groups.append(list(range(4*g, 4*g+4)))
    groups.append([40, 41, 42])
    for g in range(4): groups.append(list(range(43+4*g, 43+4*g+4)))
    NG = len(groups)
    tokA, tokB = {}, {}
    def issue_A(g):
        steps = groups[g]
        slot = g % NSLOT
        for n, st in enumerate(steps):
            if st < NU:
                p(f"s_add_u32 m0, s{sM0}, {slot*16384 + n*4096}")
                p(f"s_add_u32 s{sT0}, s{sAoff}, {st*32*1024}")
                tokA[g] = vm.op(f"buffer_load_dwordx4 v{vDW2}, {sr(RW2,4)}, s{sT0} offen lds")
            else:
                p(f"s_add_u32 m0, s{sM0}, {slot*16384 + n*4096}")
                p(f"s_add_u32 s{sT0}, s{sAoff}, {(st-NU)*32*1024}")
                tokA[g] = vm.op(f"buffer_load_dwordx4 v{vDWO}, {sr(RWO,4)}, s{sT0} offen lds")
    def issue_B(g):
        steps = groups[g]
        ring = g % NSLOT
        if steps[0] < NU:
            p(f"s_add_u32 s{sT0}, s{sBoff}, {WS_H + steps[0]*1024}")
            fl = ""
        else:
            p(f"s_add_u32 s{sT0}, s{sOld}, {(steps[0]-NU)*1024}")
            fl = " sc1"
        for n, st in enumerate(steps):
            tokB[g] = vm.op(f"buffer_load_dwordx4 {ar(aB + (ring*4+n)*4, 4)}, v{vL16}, {sr(RWS,4)}, s{sT0} offen offset:{n*1024}{fl}")
    def issue_group(g):
        issue_A(g); issue_B(g)
    p(f"s_lshl_b32 s{sM0}, s{sW}, 10")
    for g in range(D): issue_group(g)
    for j in range(4):
        tok_x = vm.op(f"buffer_load_dwordx2 {vr(vXin+2*j,2)}, v{vXo}, {sr(RX,4)}, s{sXoff} offen offset:{j*32}")
    for r in range(16):
        p(f"v_mov_b32 v{vAccG+r}, 0")
        p(f"v_mov_b32 v{vAccS+r}, 0")
    vm.wait(tok_a)
    vO = vT
    vAp, vAn, vAx = vT+16, vT+20, vT+24
    vN = vTmp2 + 80
    for hh in range(4):
        kv, z, e = vKV + 8*hh, vZ + 8*hh, vE + 4*hh
        for q in range(4):
            p(f"v_cvt_pk_bf16_f32 v{vAp+q}, v{kv+2*q}, v{kv+2*q+1}")
            p(f"v_cvt_pk_bf16_f32 v{vAx+q}, v{z+2*q}, v{z+2*q+1}")
        for q in range(4):
            p(f"v_and_b32 v{vAn+q}, v{vMn}, v{vAp+q}")
            p(f"v_and_b32 v{vAp+q}, v{vMp}, v{vAp+q}")
            p(f"v_and_or_b32 v{vAx+q}, v{vAx+q}, v{vM1}, v{vM2}")
        p(f"v_mfma_f32_16x16x32_bf16 {vr(kv,4)}, {vr(vAp,4)}, {vr(e,4)}, 0")
        p(f"v_mfma_f32_16x16x32_bf16 {vr(kv+4,4)}, {vr(vAn,4)}, {vr(e,4)}, 0")
        p(f"v_mfma_f32_16x16x32_bf16 {vr(z,4)}, {vr(vAx,4)}, {vr(e,4)}, 0")
    for hh in range(4):
        kv, z = vKV + 8*hh, vZ + 8*hh
        a, b = z+4, z+5
        p(f"v_rcp_f32 v{a}, v{z+2}")
        p(f"v_rcp_f32 v{b}, v{z+3}")
        p(f"v_mov_b32 v{z+6}, {hx(1e-6)}")
        p(f"v_fmac_f32 v{z+6}, v{z}, v{a}")
        p(f"v_fmac_f32 v{z+6}, v{z+1}, v{b}")
        p(f"v_rcp_f32 v{z+6}, v{z+6}")
        p(f"v_mul_f32 v{a}, v{a}, v{z+6}")
        p(f"v_mul_f32 v{b}, v{b}, v{z+6}")
        for r in range(4):
            p(f"v_mul_f32 v{kv+r}, v{kv+r}, v{a}")
            p(f"v_fmac_f32 v{kv+r}, v{kv+4+r}, v{b}")
        o = vO + 4*(hh>>1) + 2*(hh&1)
        p(f"v_cvt_pk_bf16_f32 v{o}, v{kv}, v{kv+1}")
        p(f"v_cvt_pk_bf16_f32 v{o+1}, v{kv+2}, v{kv+3}")
    for sp in range(2):
        tok_o = vm.op(f"buffer_store_dwordx4 {vr(vO+4*sp,4)}, v{vL16}, {sr(RWS,4)}, s{sOst} offen offset:{sp*1024} sc1")
    G_SIG = D
    DB = 2
    G_CHK = 11 - DB
    G_POLL = G_CHK - (D - 1)
    tok_poll = None
    for g in range(NG):
        steps = groups[g]
        slot, ring = g % NSLOT, g % NSLOT
        tok = max(tokA[g], tokB[g])
        if g == G_SIG: tok = max(tok, tok_o)
        if g == G_CHK: tok = max(tok, tok_poll)
        vm.wait(tok)
        p("s_barrier")
        if g == G_SIG:
            p(f"""
            s_cmp_lg_u32 s{sW}, 0
            s_cbranch_scc1 L_{name}_nosig
            s_lshl_b32 s{sT0}, s{sTB64}, 2
            v_mov_b32 v{vT}, 1
            s_mov_b64 s[{sEX}:{sEX+1}], exec
            s_mov_b64 exec, 1
            buffer_atomic_add v{vT}, off, {sr(RDBG,4)}, s{sT0}
            s_mov_b64 exec, s[{sEX}:{sEX+1}]
            L_{name}_nosig:
            """)
        if g == G_POLL:
            p(f"s_lshl_b32 s{sT0}, s{sTB64}, 2")
            tok_poll = vm.op(f"buffer_load_dword v{vPoll}, off, {sr(RDBG,4)}, s{sT0} sc1")
        if g == G_CHK:
            p(f"""
            v_readfirstlane_b32 s{sT0}, v{vPoll}
            s_cmp_ge_u32 s{sT0}, 8
            s_cbranch_scc1 L_{name}_ok
            s_mov_b32 s{sT1}, 0
            L_{name}_spin:
            s_sleep 2
            s_lshl_b32 s{sT0}, s{sTB64}, 2
            buffer_load_dword v{vPoll}, off, {sr(RDBG,4)}, s{sT0} sc1
            s_waitcnt vmcnt(0)
            v_readfirstlane_b32 s{sT0}, v{vPoll}
            s_add_u32 s{sT1}, s{sT1}, 1
            s_cmp_ge_u32 s{sT1}, 0x100000
            s_cbranch_scc1 L_{name}_ok
            s_cmp_lt_u32 s{sT0}, 8
            s_cbranch_scc1 L_{name}_spin
            L_{name}_ok:
            """)
        if g + D < NG:
            issue_A(g + D)
        if g + D < 11:
            issue_B(g + D)
        if g >= G_CHK and g + DB < NG:
            issue_B(g + DB)
        def rd(n, st, buf):
            base = slot*16384 + n*4096
            A = vA2 if st < NU else vAO
            second = 1024 if st < NU else 2048
            hi = 0
            if base >= 65536: hi, base = 4, base - 65536
            for j in range(4):
                p(f"ds_read_b64_tr_b16 {vr(vAf+16*buf+4*j,2)}, v{A+hi+j} offset:{base}")
                p(f"ds_read_b64_tr_b16 {vr(vAf+16*buf+4*j+2,2)}, v{A+hi+j} offset:{base+second}")
        rd(0, steps[0], 0)
        for n, st in enumerate(steps):
            buf = n & 1
            if n + 1 < len(steps):
                rd(n+1, steps[n+1], buf ^ 1)
                p("s_waitcnt lgkmcnt(8)")
            else:
                p("s_waitcnt lgkmcnt(0)")
            acc = vAccG if st < NU else vAccS
            for j in range(4):
                p(f"v_mfma_f32_16x16x32_bf16 {vr(acc+4*j,4)}, {vr(vAf+16*buf+4*j,4)}, {ar(aB+(ring*4+n)*4,4)}, {vr(acc+4*j,4)}")
    vm.wait(tok_x)
    c2 = LN2*LN2
    p(f"s_mov_b32 s{sT1}, {hx(c2)}")
    t = vT
    for j in range(4):
        for r in range(4):
            g_, s_ = vAccG+4*j+r, vAccS+4*j+r
            p(f"v_exp_f32 v{t+r}, v{g_}")
            p(f"v_mul_f32 v{s_}, v{s_}, v{g_}")
        for r in range(4):
            p(f"v_add_f32 v{t+r}, 1.0, v{t+r}")
        for r in range(4):
            p(f"v_rcp_f32 v{t+r}, v{t+r}")
        x0, x1 = vXin+2*j, vXin+2*j+1
        p(f"v_lshlrev_b32 v{t+4}, 16, v{x0}")
        p(f"v_and_b32 v{t+5}, 0xffff0000, v{x0}")
        p(f"v_lshlrev_b32 v{t+6}, 16, v{x1}")
        p(f"v_and_b32 v{t+7}, 0xffff0000, v{x1}")
        for r in range(4):
            s_ = vAccS+4*j+r
            p(f"v_mul_f32 v{s_}, v{s_}, v{t+r}")
        for r in range(4):
            s_ = vAccS+4*j+r
            p(f"v_fma_f32 v{t+4+r}, v{s_}, s{sT1}, v{t+4+r}")
        p(f"v_cvt_pk_bf16_f32 v{t+8+2*j}, v{t+4}, v{t+5}")
        p(f"v_cvt_pk_bf16_f32 v{t+9+2*j}, v{t+6}, v{t+7}")
        vm.op(f"buffer_store_dwordx2 {vr(t+8+2*j,2)}, v{vXo}, {sr(ROUT,4)}, s{sXoff} offen offset:{j*32}")
    p(f"L_{name}_end:")
    p("s_endpgm")
    n = p.fix_hazards()
    text = kernel_head(name) + p.text() + kernel_desc(name, 256 + 16*NSLOT, 96, 256) + ".text\n"
    return text, LDS, n

if __name__ == "__main__":
    t, lds, n = gen_k2()
    print(t); print("; lds", lds, "nops", n)
```

```python
import sys
sys.path.insert(0,'gen')
from mk import check
from k1 import gen_k1
from k2 import gen_k2
from build import assemble_file, HEADER
from common import *
from fw import *
def empty(name="e_kernel"):
    p = Prog(); p("s_endpgm")
    return kernel_head(name) + p.text() + kernel_desc(name, 8, 16, 8) + ".text\n"
t1, l1, n1 = gen_k1(); t2, l2, n2 = gen_k2(); te = empty()
K1 = ("k1_kernel", t1, l1, 256, 256); K2 = ("k2_kernel", t2, l2, 256, 256); KE = ("e_kernel", te, 0, 256, 256)
def asm_list(seq):
    out = HEADER
    for (name, text, lds, grid, block) in seq:
        out += f"; @launch kernel={name} grid=({grid},1,1) block=({block},1,1) lds={lds}\n"
    out += '.amdgcn_target "amdgcn-amd-amdhsa--gfx950"\n'
    seen = set()
    for (name, text, lds, grid, block) in seq:
        if name in seen: continue
        seen.add(name); out += text
    return out, sorted(seen)
for tag, seq in dict(A=[K1,K2], B=[K1,K2,KE], C=[KE,K1,K2], D=[K1,K2,K2], E=[K1,K1,K2], F=[K1,K2,KE,KE,KE,KE]).items():
    a, names = asm_list(seq)
    check(a, names, "v"+tag)
    open(f"var_{tag}.s", "w").write(a)
```
